```python
import torch

def _softmax(x, axis=-1):
    return torch.softmax(x, dim=axis)
def _gelu(x):
    return torch.nn.functional.gelu(x, approximate="tanh")
def _silu(x):
    return torch.nn.functional.silu(x)
def _sigmoid(x):
    return torch.sigmoid(x)
def _layernorm(x, axis=-1, eps=1e-5):
    m = x.mean(dim=axis, keepdim=True)
    v = x.var(dim=axis, keepdim=True, unbiased=False)
    return (x - m) / torch.sqrt(v + eps)
def _scatter_add(tgt, idx, src, axis=0):
    return tgt.clone().index_add_(axis, idx, src)
def _segment_sum(src, seg, n):
    out = torch.zeros((n,) + src.shape[1:], dtype=src.dtype)
    return out.index_add_(0, seg, src)
def _pad(x, pw):
    flat = tuple(v for pair in reversed(pw) for v in pair)
    return torch.nn.functional.pad(x, flat)

kernel_name = 'sequential_preLN__sliding_block__mixer_channel_mlp__prompt'

def setup_inputs():

    _w = (lambda a: (lambda t: t.to(torch.bfloat16) if t.is_floating_point() else t)(torch.as_tensor(a)))
    def _A_setup():
        B, S, D = 1, 2048, 1024
        return {
            "x": _w((lambda *s: torch.randn(*s, dtype=torch.bfloat16) * 0.05)(B, S, D)),
            "wqkv": _w((lambda *s: torch.randn(*s, dtype=torch.bfloat16) * 0.05)(D, 3 * D)),
            "wo": _w((lambda *s: torch.randn(*s, dtype=torch.bfloat16) * 0.05)(D, D)),
        }
    _A_in = _A_setup()

    def _B_setup():
        B, S, D, F = 1, 2048, 1024, 3584
        return {
            "x": _w((lambda *s: torch.randn(*s, dtype=torch.bfloat16) * 0.05)(B, S, D)),
            "w1": _w((lambda *s: torch.randn(*s, dtype=torch.bfloat16) * 3.2)(D, F) * (D ** -0.5)),
            "b1": _w((lambda *s: torch.randn(*s, dtype=torch.bfloat16) * 1.6)(F)),
            "w2": _w((lambda *s: torch.randn(*s, dtype=torch.bfloat16) * 0.4)(F, D) * (F ** -0.5)),
            "b2": _w((lambda *s: torch.randn(*s, dtype=torch.bfloat16) * 0.8)(D)),
        }
    _B_in = _B_setup()

    return {
        "A_x": _A_in["x"],
        "A_wqkv": _A_in["wqkv"],
        "A_wo": _A_in["wo"],
        "B_x": _B_in["x"],
        "B_w1": _B_in["w1"],
        "B_b1": _B_in["b1"],
        "B_w2": _B_in["w2"],
        "B_b2": _B_in["b2"],
    }

def reference(A_x, A_wqkv, A_wo, B_x, B_w1, B_b1, B_w2, B_b2):
    def _A_ref(x, wqkv, wo):
        B, S, D = x.shape
        H = 32; Dh = D // H; W = 256
        qkv = (lambda x, *d: x.permute(*d))((x @ wqkv).reshape(B, S, 3, H, Dh), 2, 0, 3, 1, 4)
        q, k, v = qkv[0], qkv[1], qkv[2]
        scores = torch.einsum("bhqd,bhkd->bhqk", q, k) * (Dh ** -0.5)
        idx = torch.arange(S)
        mask = (idx[:, None] - idx[None, :] >= 0) & (idx[:, None] - idx[None, :] < W)
        scores = torch.where(mask[None, None], scores, -1e9)
        p = _softmax(scores, axis=-1)
        o = torch.einsum("bhqk,bhkd->bhqd", p, v)
        return (lambda x, *d: x.permute(*d))(o, 0, 2, 1, 3).reshape(B, S, D) @ wo

    def _B_ref(x, w1, b1, w2, b2):
        y = _layernorm(x, axis=-1)
        h = _gelu(torch.einsum("bsd,df->bsf", y, w1) + b1)
        return torch.einsum("bsf,fd->bsd", h, w2) + b2

    x = A_x
    h = x + _A_ref(_layernorm(x, axis=-1), A_wqkv, A_wo)
    h2 = h + _B_ref(_layernorm(h, axis=-1), B_w1, B_b1, B_w2, B_b2)
    return h2
```

```python
import math
from gen import (S, D, H, DH, WS_QKV, WS_O, kernel_header, load_ptr, fix_srd, f2u)


def attention(a, name):
    sQ, sO = 4, 8
    LDQ = 3 * D * 2
    kernel_header(a, name)
    a(f"s_cmp_ge_u32 s2, 256")
    a(f"s_cbranch_scc1 {name}_end")
    load_ptr(a, sQ, ("ws", WS_QKV))
    load_ptr(a, sO, ("ws", WS_O))
    s_h, s_Q0, s_w, s_q0 = 12, 13, 14, 15
    a(f"""
    s_and_b32 s{s_h}, s2, 31
    s_lshr_b32 s{s_Q0}, s2, 5
    s_lshl_b32 s{s_Q0}, s{s_Q0}, 8
    v_lshrrev_b32 v1, 6, v0
    v_and_b32 v0, 63, v0
    s_nop 0
    v_readfirstlane_b32 s{s_w}, v1
    s_waitcnt lgkmcnt(0)
    """)
    fix_srd(a, sQ, ("ws", WS_QKV), S * 3 * D * 2)
    fix_srd(a, sO, ("ws", WS_O), S * D * 2)
    a(f"""
    s_lshl_b32 s16, s{s_w}, 5
    s_add_u32 s{s_q0}, s{s_Q0}, s16
    """)
    a(f"""
    v_lshrrev_b32 v1, 2, v0
    s_lshl_b32 s16, s{s_w}, 6
    s_add_u32 s16, s16, s{s_Q0}
    s_sub_u32 s16, s16, 256
    v_add_u32 v1, s16, v1
    s_mov_b32 s17, {LDQ}
    v_mul_lo_u32 v1, v1, s17
    v_and_b32 v2, 3, v0
    v_lshlrev_b32 v2, 4, v2
    v_add_u32 v1, v1, v2
    s_lshl_b32 s18, s{s_h}, 6
    s_add_u32 s19, s18, {2*D*2}
    v_add_u32 v1, s19, v1
    s_lshl_b32 s20, s{s_w}, 12
    """)
    for p in range(4):
        a(f"s_add_u32 m0, s20, {p*1024}")
        if p:
            a(f"v_add_u32 v1, {16*LDQ}, v1")
        else:
            a("s_nop 0")
        a(f"buffer_load_dwordx4 v1, s[{sQ}:{sQ+3}], 0 offen lds")
    QF = 8
    KF = 16
    SR = 88
    OA = 232
    a(f"""
    v_and_b32 v2, 31, v0
    v_lshrrev_b32 v3, 5, v0
    v_add_u32 v4, s{s_q0}, v2
    v_mul_lo_u32 v4, v4, s17
    v_lshl_add_u32 v4, v3, 4, v4
    v_add_u32 v4, s18, v4
    buffer_load_dwordx4 v[{QF}:{QF+3}], v4, s[{sQ}:{sQ+3}], 0 offen
    buffer_load_dwordx4 v[{QF+4}:{QF+7}], v4, s[{sQ}:{sQ+3}], 0 offen offset:32
    """)
    a(f"v_add_u32 v5, {(-256*LDQ + D*2) & 0xffffffff}, v4")
    for j in range(9):
        if j:
            a(f"v_add_u32 v5, {32*LDQ}, v5")
        a(f"buffer_load_dwordx4 v[{KF+8*j}:{KF+8*j+3}], v5, s[{sQ}:{sQ+3}], 0 offen")
        a(f"buffer_load_dwordx4 v[{KF+8*j+4}:{KF+8*j+7}], v5, s[{sQ}:{sQ+3}], 0 offen offset:32")
    for r in range(16):
        a(f"v_mov_b32 v{OA+r}, 0")
    a(f"""
    v_lshlrev_b32 v6, 2, v3
    v_sub_u32 v6, v2, v6
    """)
    for j in range(9):
        a(f"s_waitcnt vmcnt({16-2*j})")
        c = SR + 16 * j
        k = KF + 8 * j
        a(f"v_mfma_f32_32x32x16_bf16 v[{c}:{c+15}], v[{k}:{k+3}], v[{QF}:{QF+3}], 0")
        a(f"v_mfma_f32_32x32x16_bf16 v[{c}:{c+15}], v[{k+4}:{k+7}], v[{QF+4}:{QF+7}], v[{c}:{c+15}]")
    a("s_nop 15")
    a("s_nop 7")
    NEG = f2u(-1e30)
    a(f"v_mov_b32 v7, {NEG}")
    for r in range(16):
        cr = (r & 3) + 8 * (r >> 2)
        a(f"v_cmp_ge_i32 vcc, v6, {cr}") if False else None
        a(f"v_cmp_le_i32 vcc, {cr}, v6")
        a("s_nop 1")
        a(f"v_cndmask_b32 v{SR+r}, v{SR+r}, v7, vcc")
        a(f"v_cndmask_b32 v{SR+128+r}, v7, v{SR+128+r}, vcc")
    for j in range(8):
        a(f"s_add_u32 s21, s{s_q0}, {32*j}")
        a(f"s_cmp_ge_u32 s21, 256")
        a(f"s_cbranch_scc1 {name}_nofill")
        for r in range(16):
            a(f"v_mov_b32 v{SR+16*j+r}, v7")
    a.label(f"{name}_nofill")
    a(f"v_max3_f32 v1, v{SR}, v{SR+1}, v{SR+2}")
    r = 3
    while r < 144:
        if r + 1 < 144:
            a(f"v_max3_f32 v1, v1, v{SR+r}, v{SR+r+1}")
            r += 2
        else:
            a(f"v_max_f32 v1, v1, v{SR+r}")
            r += 1
    cs = (DH ** -0.5) * math.log2(math.e)
    a(f"""
    v_mov_b32 v2, v1
    s_nop 1
    v_permlane32_swap_b32 v1, v2
    s_nop 1
    v_max_f32 v1, v1, v2
    s_mov_b32 s22, {f2u(cs)}
    v_mul_f32 v1, s22, v1
    v_mov_b32 v2, 0
    """)
    for j in range(9):
        c = SR + 16 * j
        for r in range(16):
            a(f"v_fma_f32 v{c+r}, v{c+r}, s22, -v1")
        for r in range(16):
            a(f"v_exp_f32 v{c+r}, v{c+r}")
        for r in range(0, 16, 2):
            a(f"v_add_f32 v2, v2, v{c+r}")
            a(f"v_add_f32 v2, v2, v{c+r+1}")
            a(f"v_cvt_pk_bf16_f32 v{KF+8*j+r//2}, v{c+r}, v{c+r+1}")
    a(f"""
    v_mov_b32 v3, v2
    s_nop 1
    v_permlane32_swap_b32 v2, v3
    s_nop 1
    v_add_f32 v2, v2, v3
    v_rcp_f32 v2, v2
    """)
    a(f"""
    v_lshrrev_b32 v3, 2, v0
    v_and_b32 v3, 3, v3
    v_lshrrev_b32 v4, 5, v0
    v_lshl_add_u32 v3, v4, 2, v3
    s_lshl_b32 s16, s{s_w}, 5
    v_add_u32 v3, s16, v3
    v_lshlrev_b32 v3, 6, v3
    v_lshrrev_b32 v4, 4, v0
    v_and_b32 v4, 1, v4
    v_lshl_add_u32 v3, v4, 5, v3
    v_and_b32 v4, 3, v0
    v_lshl_add_u32 v3, v4, 3, v3
    s_waitcnt vmcnt(0)
    s_barrier
    """)
    VF = SR
    def vreads(j, b):
        out = []
        for s in range(2):
            for t in range(2):
                r = VF + b * 8 + s * 4 + t * 2
                out.append(f"ds_read_b64_tr_b16 v[{r}:{r+1}], v3 offset:{j*2048 + s*1024 + t*512}")
        return out
    for ins in vreads(0, 0):
        a(ins)
    for j in range(9):
        b = j & 1
        if j < 8:
            for ins in vreads(j + 1, b ^ 1):
                a(ins)
            a("s_waitcnt lgkmcnt(4)")
        else:
            a("s_waitcnt lgkmcnt(0)")
        for s in range(2):
            v = VF + b * 8 + s * 4
            p = KF + 8 * j + s * 4
            a(f"v_mfma_f32_32x32x16_bf16 v[{OA}:{OA+15}], v[{v}:{v+3}], v[{p}:{p+3}], v[{OA}:{OA+15}]")
    a("s_nop 15")
    a("s_nop 7")
    a(f"""
    v_and_b32 v4, 31, v0
    v_lshrrev_b32 v5, 5, v0
    v_add_u32 v4, s{s_q0}, v4
    v_lshlrev_b32 v4, 11, v4
    v_lshl_add_u32 v4, v5, 3, v4
    v_add_u32 v4, s18, v4
    """)
    for g in range(4):
        o = OA + 4 * g
        for r in range(4):
            a(f"v_mul_f32 v{o+r}, v{o+r}, v2")
        a(f"v_cvt_pk_bf16_f32 v{o}, v{o}, v{o+1}")
        a(f"v_cvt_pk_bf16_f32 v{o+1}, v{o+2}, v{o+3}")
        a(f"buffer_store_dwordx2 v[{o}:{o+1}], v4, s[{sO}:{sO+3}], 0 offen offset:{g*16}")
    a.label(f"{name}_end")
    a("s_endpgm")
    return dict(name=name, grid=256, block=512, lds=32768, vgpr=248)
```

```python
import sys

S = 2048
D = 1024
F = 3584
H = 32
DH = 32

WS_XN = 0
WS_QKV = 4 << 20
WS_O = 16 << 20
WS_H = 20 << 20
WS_Y = 24 << 20
WS_HH = 28 << 20

KA_X, KA_WQKV, KA_WO, KA_BX, KA_W1, KA_B1, KA_W2, KA_B2, KA_OUT, KA_DBG, KA_WS = [8 * i for i in range(11)]


class Asm:
    def __init__(self):
        self.lines = []

    def __call__(self, s):
        for ln in s.strip("\n").split("\n"):
            self.lines.append("    " + ln.strip())

    def label(self, l):
        self.lines.append(l + ":")

    def raw(self, s):
        self.lines.append(s)

    def text(self):
        return "\n".join(self.lines) + "\n"


def kernel_header(a, name):
    a.raw(f".globl {name}")
    a.raw(".p2align 8")
    a.raw(f".type {name},@function")
    a.label(name)


def kernel_desc(name, vgpr, sgpr=102, accum=None):
    if accum is None:
        accum = (vgpr + 3) // 4 * 4
    return f""".amdhsa_kernel {name}
  .amdhsa_next_free_vgpr {vgpr}
  .amdhsa_next_free_sgpr {sgpr}
  .amdhsa_accum_offset {accum}
  .amdhsa_group_segment_fixed_size 0
  .amdhsa_kernarg_size 88
  .amdhsa_user_sgpr_count 2
  .amdhsa_user_sgpr_kernarg_segment_ptr 1
  .amdhsa_system_sgpr_workgroup_id_x 1
.end_amdhsa_kernel
"""


def load_ptr(a, sreg, src):
    kind, off = src
    if kind == "arg":
        a(f"s_load_dwordx2 s[{sreg}:{sreg+1}], s[0:1], {off}")
    else:
        a(f"s_load_dwordx2 s[{sreg}:{sreg+1}], s[0:1], {KA_WS}")


def fix_srd(a, sreg, src, nbytes):
    kind, off = src
    if kind == "ws" and off:
        a(f"s_add_u32 s{sreg}, s{sreg}, {off}")
        a(f"s_addc_u32 s{sreg+1}, s{sreg+1}, 0")
    a(f"s_and_b32 s{sreg+1}, s{sreg+1}, 0xffff")
    a(f"s_mov_b32 s{sreg+2}, {nbytes}")
    a(f"s_mov_b32 s{sreg+3}, 0x00020000")


def gemm(a, name, N, K, BN, a_src, w_src, out_src, epi, res_src=None, bias_src=None, nstage=3):
    BM = 128
    NT = N // BN
    assert NT == 16 and S // BM == 16
    NI = BN // 32
    NST = (BN + 63) // 64
    STAGE = 16384 + NST * 8192
    KT = K // 64
    PP = 4 + 2 * NST
    lds_bytes = STAGE * nstage

    sA, sW, sO, sR, sBi = 4, 8, 12, 16, 20
    s_m0, s_n0, s_wave = 24, 25, 26
    kernel_header(a, name)
    a(f"s_cmp_ge_u32 s2, 256")
    a(f"s_cbranch_scc1 {name}_end")
    load_ptr(a, sA, a_src)
    load_ptr(a, sW, w_src)
    load_ptr(a, sO, out_src)
    if res_src:
        load_ptr(a, sR, res_src)
    if bias_src:
        load_ptr(a, sBi, bias_src)
    a(f"""
    s_and_b32 s27, s2, 7
    s_lshr_b32 s28, s2, 3
    s_and_b32 s29, s27, 1
    s_lshl_b32 s29, s29, 3
    s_and_b32 s30, s28, 7
    s_add_u32 s29, s29, s30
    s_lshr_b32 s30, s27, 1
    s_lshl_b32 s30, s30, 2
    s_lshr_b32 s31, s28, 3
    s_add_u32 s30, s30, s31
    s_lshl_b32 s{s_m0}, s29, 7
    s_mul_i32 s{s_n0}, s30, {BN}
    v_lshrrev_b32 v1, 6, v0
    v_and_b32 v0, 63, v0
    s_nop 0
    v_readfirstlane_b32 s{s_wave}, v1
    s_waitcnt lgkmcnt(0)
    """)
    fix_srd(a, sA, a_src, S * K * 2)
    fix_srd(a, sW, w_src, K * N * 2)
    fix_srd(a, sO, out_src, S * N * 2)
    if res_src:
        fix_srd(a, sR, res_src, S * N * 2)
    if bias_src:
        fix_srd(a, sBi, bias_src, N * 2)
    a(f"s_mov_b32 s40, {STAGE}")
    a(f"s_cmp_ge_u32 s{s_wave}, 4")
    a(f"s_cbranch_scc1 {name}_prod")

    XF = [8, 24]
    WF = [40, 40 + 4 * 7]
    vX = [96, 97]
    vW = 98
    ACC = 128
    s_delta, s_cnt, s_st = 27, 28, 29
    a(f"""
    s_and_b32 s30, s{s_wave}, 1
    s_lshr_b32 s31, s{s_wave}, 1
    v_and_b32 v1, 15, v0
    v_lshrrev_b32 v2, 4, v0
    """)
    a(f"""
    v_lshrrev_b32 v3, 1, v1
    v_xor_b32 v3, v3, v2
    v_lshlrev_b32 v3, 4, v3
    s_lshl_b32 s32, s30, 13
    v_lshlrev_b32 v4, 7, v1
    v_add_u32 v4, s32, v4
    v_add_u32 v{vX[0]}, v4, v3
    v_xor_b32 v{vX[1]}, 64, v{vX[0]}
    """)
    a(f"""
    v_lshrrev_b32 v3, 2, v1
    v_lshrrev_b32 v4, 1, v3
    v_and_b32 v5, 1, v2
    v_lshlrev_b32 v5, 1, v5
    v_or_b32 v4, v4, v5
    v_lshlrev_b32 v5, 3, v2
    v_add_u32 v5, v5, v3
    v_lshlrev_b32 v5, 7, v5
    v_and_b32 v6, 3, v0
    v_lshlrev_b32 v6, 3, v6
    v_add_u32 v5, v5, v6
    v_add_u32 v5, 16384, v5
    s_mul_i32 s32, s31, {NI}
    """)
    for i in range(NI):
        a(f"""
        s_add_u32 s33, s32, {i}
        s_lshr_b32 s34, s33, 2
        s_lshl_b32 s34, s34, 13
        s_and_b32 s33, s33, 3
        v_xor_b32 v6, s33, v4
        v_lshlrev_b32 v6, 5, v6
        v_add_u32 v6, s34, v6
        v_add_u32 v{vW+i}, v6, v5
        """)
    for r in range(NI * 16):
        a(f"v_mov_b32 v{ACC+r}, 0")

    def reads(setidx, kk):
        out = []
        for j in range(4):
            out.append(f"ds_read_b128 v[{XF[setidx]+4*j}:{XF[setidx]+4*j+3}], v{vX[kk]} offset:{j*2048}")
        for i in range(NI):
            b = WF[setidx] + 4 * i
            out.append(f"ds_read_b64_tr_b16 v[{b}:{b+1}], v{vW+i} offset:{kk*4096}")
            out.append(f"ds_read_b64_tr_b16 v[{b+2}:{b+3}], v{vW+i} offset:{kk*4096+512}")
        return out

    def mfmas(setidx):
        out = []
        for i in range(NI):
            for j in range(4):
                c = ACC + (i * 4 + j) * 4
                w = WF[setidx] + 4 * i
                x = XF[setidx] + 4 * j
                out.append(f"v_mfma_f32_16x16x32_bf16 v[{c}:{c+3}], v[{w}:{w+3}], v[{x}:{x+3}], v[{c}:{c+3}]")
        return out

    def interleave(mf, rd):
        out = []
        rd = list(rd)
        for m in mf:
            out.append(m)
            if rd:
                out.append(rd.pop(0))
        out += rd
        return out

    a(f"s_barrier")
    for r in reads(0, 0):
        a(r)
    a(f"s_mov_b32 s{s_cnt}, 0")
    a(f"s_mov_b32 s{s_st}, 0")
    a.label(f"{name}_cloop")
    a("s_waitcnt lgkmcnt(0)")
    for ins in interleave(mfmas(0), reads(1, 1)):
        a(ins)
    a(f"""
    s_add_u32 s{s_st}, s{s_st}, 1
    s_cmp_eq_u32 s{s_st}, {nstage}
    s_cselect_b32 s{s_delta}, {-(nstage-1)*STAGE & 0xffffffff}, s40
    s_cselect_b32 s{s_st}, 0, s{s_st}
    s_add_u32 s{s_cnt}, s{s_cnt}, 1
    s_waitcnt lgkmcnt(0)
    s_cmp_eq_u32 s{s_cnt}, {KT}
    s_cbranch_scc1 {name}_clast
    s_barrier
    """)
    for r in [vX[0], vX[1]] + [vW + i for i in range(NI)]:
        a(f"v_add_u32 v{r}, s{s_delta}, v{r}")
    for ins in interleave(mfmas(1), reads(0, 0)):
        a(ins)
    a(f"s_branch {name}_cloop")
    a.label(f"{name}_clast")
    for ins in mfmas(1):
        a(ins)
    a("s_nop 7")
    a("s_nop 7")
    a(f"""
    v_and_b32 v1, 15, v0
    v_lshrrev_b32 v2, 4, v0
    s_lshl_b32 s32, s30, 6
    s_add_u32 s32, s32, s{s_m0}
    v_add_u32 v1, s32, v1
    s_mul_i32 s33, s31, {BN//2}
    s_add_u32 s33, s33, s{s_n0}
    v_lshlrev_b32 v2, 2, v2
    v_add_u32 v2, s33, v2
    s_mov_b32 s34, {N*2}
    v_mul_lo_u32 v3, v1, s34
    v_lshl_add_u32 v3, v2, 1, v3
    v_lshlrev_b32 v4, 1, v2
    """)
    if bias_src:
        for i in range(NI):
            a(f"buffer_load_dwordx2 v[{8+2*i}:{9+2*i}], v4, s[{sBi}:{sBi+3}], 0 offen offset:{i*32}")
        a("s_waitcnt vmcnt(0)")
        for i in range(NI):
            b = 40 + 4 * i
            a(f"""
            v_lshlrev_b32 v{b}, 16, v{8+2*i}
            v_and_b32 v{b+1}, 0xffff0000, v{8+2*i}
            v_lshlrev_b32 v{b+2}, 16, v{9+2*i}
            v_and_b32 v{b+3}, 0xffff0000, v{9+2*i}
            """)
    if epi == "gelu":
        import math
        c1 = 2.0 * math.sqrt(2.0 / math.pi) * math.log2(math.e)
        c2 = c1 * 0.044715
        a(f"s_mov_b32 s36, {f2u(-c1)}")
        a(f"s_mov_b32 s37, {f2u(-c2)}")
    for j in range(4):
        a(f"s_mov_b32 s35, {j*16*N*2}")
        if res_src:
            for i in range(NI):
                a(f"buffer_load_dwordx2 v[{8+2*i}:{9+2*i}], v3, s[{sR}:{sR+3}], s35 offen offset:{i*32}")
            a("s_waitcnt vmcnt(0)")
        for i in range(NI):
            c = ACC + (i * 4 + j) * 4
            if bias_src:
                for r in range(4):
                    a(f"v_add_f32 v{c+r}, v{c+r}, v{40+4*i+r}")
            if epi == "gelu":
                for r in range(4):
                    x = c + r
                    a(f"v_mul_f32 v{100+r}, v{x}, v{x}")
                for r in range(4):
                    a(f"v_mov_b32 v{104+r}, s36")
                for r in range(4):
                    a(f"v_fmac_f32 v{104+r}, s37, v{100+r}")
                for r in range(4):
                    a(f"v_mul_f32 v{104+r}, v{104+r}, v{c+r}")
                for r in range(4):
                    a(f"v_exp_f32 v{104+r}, v{104+r}")
                for r in range(4):
                    a(f"v_add_f32 v{104+r}, 1.0, v{104+r}")
                for r in range(4):
                    a(f"v_rcp_f32 v{104+r}, v{104+r}")
                for r in range(4):
                    a(f"v_mul_f32 v{c+r}, v{c+r}, v{104+r}")
            if res_src:
                a(f"""
                v_lshlrev_b32 v100, 16, v{8+2*i}
                v_and_b32 v101, 0xffff0000, v{8+2*i}
                v_lshlrev_b32 v102, 16, v{9+2*i}
                v_and_b32 v103, 0xffff0000, v{9+2*i}
                v_add_f32 v{c}, v{c}, v100
                v_add_f32 v{c+1}, v{c+1}, v101
                v_add_f32 v{c+2}, v{c+2}, v102
                v_add_f32 v{c+3}, v{c+3}, v103
                """)
            a(f"v_cvt_pk_bf16_f32 v{c}, v{c}, v{c+1}")
            a(f"v_cvt_pk_bf16_f32 v{c+1}, v{c+2}, v{c+3}")
            a(f"buffer_store_dwordx2 v[{c}:{c+1}], v3, s[{sO}:{sO+3}], s35 offen offset:{i*32}")
    a("s_endpgm")

    a.label(f"{name}_prod")
    vA, vB, vBd = 8, 9, 10
    s_pw, s_kA, s_kB, s_buf, s_off, s_it, s_st = 27, 28, 29, 30, 31, 32, 33
    a(f"""
    s_sub_u32 s{s_pw}, s{s_wave}, 4
    v_lshrrev_b32 v1, 3, v0
    v_and_b32 v2, 7, v0
    v_lshrrev_b32 v3, 4, v0
    s_and_b32 s34, s{s_pw}, 1
    s_lshl_b32 s35, s34, 2
    """)
    a(f"""
    v_xor_b32 v4, v2, v3
    v_xor_b32 v4, s35, v4
    s_lshl_b32 s36, s{s_pw}, 3
    s_add_u32 s37, s36, s{s_m0}
    v_add_u32 v5, s37, v1
    s_mov_b32 s38, {K*2}
    v_mul_lo_u32 v5, v5, s38
    v_lshl_add_u32 v{vA}, v4, 4, v5
    """)
    a(f"""
    v_and_b32 v4, 1, v3
    s_lshl_b32 s35, s34, 1
    v_or_b32 v4, s35, v4
    v_lshlrev_b32 v4, 1, v4
    v_xor_b32 v4, v4, v2
    v_add_u32 v5, s36, v1
    s_mov_b32 s38, {N*2}
    v_mul_lo_u32 v5, v5, s38
    s_lshl_b32 s39, s{s_n0}, 1
    v_add_u32 v5, s39, v5
    v_lshl_add_u32 v{vB}, v4, 4, v5
    """)
    if BN % 64:
        a(f"""
        v_cmp_gt_u32 vcc, {(BN % 64)//8}, v4
        v_mov_b32 v6, 0x7ff00000
        s_nop 1
        v_cndmask_b32 v{vBd}, v6, v{vB}, vcc
        """)
    a(f"""
    s_mov_b32 s{s_kA}, 0
    s_mov_b32 s{s_kB}, 0
    s_lshl_b32 s{s_buf}, s{s_pw}, 10
    s_mov_b32 s{s_st}, 0
    """)

    def issue():
        for q in range(4):
            a(f"s_add_u32 m0, s{s_buf}, {q*4096}")
            a(f"s_add_u32 s{s_off}, s{s_kA}, {q*32*K*2}")
            a(f"buffer_load_dwordx4 v{vA}, s[{sA}:{sA+3}], s{s_off} offen lds")
        for st in range(NST):
            vb = vBd if (BN % 64 and st == NST - 1) else vB
            for q in range(2):
                a(f"s_add_u32 m0, s{s_buf}, {16384 + st*8192 + q*4096}")
                a(f"s_add_u32 s{s_off}, s{s_kB}, {q*32*N*2 + st*128}")
                a(f"buffer_load_dwordx4 v{vb}, s[{sW}:{sW+3}], s{s_off} offen lds")
        a(f"""
        s_add_u32 s{s_kA}, s{s_kA}, 128
        s_add_u32 s{s_kB}, s{s_kB}, {64*N*2}
        s_add_u32 s{s_st}, s{s_st}, 1
        s_cmp_eq_u32 s{s_st}, {nstage}
        s_cselect_b32 s{s_off}, {-(nstage-1)*STAGE & 0xffffffff}, s40
        s_cselect_b32 s{s_st}, 0, s{s_st}
        s_add_u32 s{s_buf}, s{s_buf}, s{s_off}
        """)

    for _ in range(nstage - 1):
        issue()
    a(f"s_waitcnt vmcnt({PP*(nstage-2)})")
    a("s_barrier")
    a(f"s_mov_b32 s{s_it}, 0")
    a.label(f"{name}_ploop")
    a(f"s_cmp_ge_u32 s{s_it}, {KT-(nstage-1)}")
    a(f"s_cbranch_scc1 {name}_pnoissue")
    issue()
    a(f"s_waitcnt vmcnt({PP*(nstage-2)})")
    a(f"s_branch {name}_pbar")
    a.label(f"{name}_pnoissue")
    a("s_waitcnt vmcnt(0)")
    a.label(f"{name}_pbar")
    a("s_barrier")
    a(f"s_add_u32 s{s_it}, s{s_it}, 1")
    a(f"s_cmp_lt_u32 s{s_it}, {KT-1}")
    a(f"s_cbranch_scc1 {name}_ploop")
    a.label(f"{name}_end")
    a("s_endpgm")
    return dict(name=name, grid=256, block=512, lds=lds_bytes, vgpr=240)


def f2u(x):
    import struct
    return "0x%08x" % struct.unpack("<I", struct.pack("<f", x))[0]


def wave_sum(a, v, tmp):
    seq = ["row_shr:1", "row_shr:2", "row_shr:4", "row_shr:8"]
    for s in seq:
        a(f"s_nop 1")
        a(f"v_add_f32_dpp v{v}, v{v}, v{v} {s} row_mask:0xf bank_mask:0xf bound_ctrl:0")
    a("s_nop 1")
    a(f"v_add_f32_dpp v{v}, v{v}, v{v} row_bcast:15 row_mask:0xa bank_mask:0xf")
    a("s_nop 1")
    a(f"v_add_f32_dpp v{v}, v{v}, v{v} row_bcast:31 row_mask:0xc bank_mask:0xf")
    a("s_nop 1")


def layernorm(a, name, in_src, out_src, double):
    sI, sO = 4, 8
    kernel_header(a, name)
    a(f"s_cmp_ge_u32 s2, 512")
    a(f"s_cbranch_scc1 {name}_end")
    load_ptr(a, sI, in_src)
    load_ptr(a, sO, out_src)
    a(f"""
    v_lshrrev_b32 v1, 6, v0
    v_and_b32 v2, 63, v0
    s_lshl_b32 s3, s2, 2
    v_add_u32 v1, s3, v1
    v_lshlrev_b32 v1, 11, v1
    v_lshl_add_u32 v1, v2, 4, v1
    s_waitcnt lgkmcnt(0)
    """)
    fix_srd(a, sI, in_src, S * D * 2)
    fix_srd(a, sO, out_src, S * D * 2)
    a(f"""
    buffer_load_dwordx4 v[4:7], v1, s[{sI}:{sI+3}], 0 offen
    buffer_load_dwordx4 v[8:11], v1, s[{sI}:{sI+3}], 0 offen offset:1024
    s_waitcnt vmcnt(0)
    """)
    for d in range(8):
        a(f"v_lshlrev_b32 v{16+2*d}, 16, v{4+d}")
        a(f"v_and_b32 v{17+2*d}, 0xffff0000, v{4+d}")
    for rep in range(2 if double else 1):
        a("v_add_f32 v40, v16, v17")
        for e in range(2, 16):
            a(f"v_add_f32 v40, v40, v{16+e}")
        wave_sum(a, 40, 41)
        a(f"""
        v_readlane_b32 s12, v40, 63
        s_nop 3
        v_mov_b32 v41, s12
        v_mul_f32 v41, {f2u(1.0/D)}, v41
        """)
        for e in range(16):
            a(f"v_sub_f32 v{16+e}, v{16+e}, v41")
        a("v_mul_f32 v40, v16, v16")
        for e in range(1, 16):
            a(f"v_fmac_f32 v40, v{16+e}, v{16+e}")
        wave_sum(a, 40, 41)
        a(f"""
        v_readlane_b32 s12, v40, 63
        s_nop 3
        v_mov_b32 v41, s12
        v_mov_b32 v42, {f2u(1e-5)}
        v_fmac_f32 v42, {f2u(1.0/D)}, v41
        v_sqrt_f32 v42, v42
        s_nop 0
        v_rcp_f32 v42, v42
        s_nop 0
        """)
        for e in range(16):
            a(f"v_mul_f32 v{16+e}, v{16+e}, v42")
        for d in range(8):
            a(f"v_cvt_pk_bf16_f32 v{4+d}, v{16+2*d}, v{17+2*d}")
        if double and rep == 0:
            for d in range(8):
                a(f"v_lshlrev_b32 v{16+2*d}, 16, v{4+d}")
                a(f"v_and_b32 v{17+2*d}, 0xffff0000, v{4+d}")
    a(f"""
    buffer_store_dwordx4 v[4:7], v1, s[{sO}:{sO+3}], 0 offen
    buffer_store_dwordx4 v[8:11], v1, s[{sO}:{sO+3}], 0 offen offset:1024
    """)
    a.label(f"{name}_end")
    a("s_endpgm")
    return dict(name=name, grid=512, block=256, lds=0, vgpr=48)


HEADER = """; Kernarg layout for this problem (88 bytes, ptrs only, base s[0:1]):
;   offset  80: d_ws      268435456 bytes workspace
"""


def build(kernels_fn):
    a = Asm()
    infos = kernels_fn(a)
    out = HEADER
    for k in infos:
        out += f"; @launch kernel={k['name']} grid=({k['grid']},1,1) block=({k['block']},1,1) lds={k['lds']}\n"
    out += '.amdgcn_target "amdgcn-amd-amdhsa--gfx950"\n.text\n'
    out += a.text()
    out += '.section .rodata,"a"\n.p2align 6\n'
    seen = set()
    for k in infos:
        if k["name"] in seen:
            continue
        seen.add(k["name"])
        out += kernel_desc(k["name"], k["vgpr"]) + ".p2align 6\n"
    return out


def all_kernels(a):
    from attn import attention
    infos = []
    infos.append(layernorm(a, "ln1_kernel", ("arg", KA_X), ("ws", WS_XN), False))
    infos.append(gemm(a, "qkv_kernel", 3 * D, D, 192, ("ws", WS_XN), ("arg", KA_WQKV), ("ws", WS_QKV), "store"))
    infos.append(attention(a, "attn_kernel"))
    infos.append(gemm(a, "wo_kernel", D, D, 64, ("ws", WS_O), ("arg", KA_WO), ("ws", WS_H), "res",
                      res_src=("arg", KA_X)))
    infos.append(layernorm(a, "ln2_kernel", ("ws", WS_H), ("ws", WS_Y), True))
    infos.append(gemm(a, "w1_kernel", F, D, 224, ("ws", WS_Y), ("arg", KA_W1), ("ws", WS_HH), "gelu",
                      bias_src=("arg", KA_B1)))
    infos.append(gemm(a, "w2_kernel", D, F, 64, ("ws", WS_HH), ("arg", KA_W2), ("arg", KA_OUT), "res",
                      res_src=("ws", WS_H), bias_src=("arg", KA_B2)))
    return infos


if __name__ == "__main__":
    sys.path.insert(0, __file__.rsplit("/", 1)[0])
    txt = build(all_kernels)
    out = sys.argv[1] if len(sys.argv) > 1 else "sequential_preLN__sliding_block__mixer_channel_mlp__prompt.s"
    open(out, "w").write(txt)
    print("wrote", out, len(txt))
```
